```python
import torch

def _softmax(x, axis=-1):
    return torch.softmax(x, dim=axis)
def _gelu(x):
    return torch.nn.functional.gelu(x, approximate="tanh")
def _silu(x):
    return torch.nn.functional.silu(x)
def _sigmoid(x):
    return torch.sigmoid(x)
def _layernorm(x, axis=-1, eps=1e-5):
    m = x.mean(dim=axis, keepdim=True)
    v = x.var(dim=axis, keepdim=True, unbiased=False)
    return (x - m) / torch.sqrt(v + eps)
def _scatter_add(tgt, idx, src, axis=0):
    return tgt.clone().index_add_(axis, idx, src)
def _segment_sum(src, seg, n):
    out = torch.zeros((n,) + src.shape[1:], dtype=src.dtype)
    return out.index_add_(0, seg, src)
def _pad(x, pw):
    flat = tuple(v for pair in reversed(pw) for v in pair)
    return torch.nn.functional.pad(x, flat)

kernel_name = 'interleave_layers__gqa_block_cached__compressed_kv_cla__decode'

def setup_inputs():

    _w = (lambda a: (lambda t: t.to(torch.bfloat16) if t.is_floating_point() else t)(torch.as_tensor(a)))
    def _A_setup():
        B, Sq, D = 1, 1, 640
        Hq, Hkv, Sk, Dh = 32, 32, 4096, 192
        assert Hq % Hkv == 0, (Hq, Hkv)
        return {
            "x": _w((lambda *s: torch.randn(*s, dtype=torch.bfloat16) * 0.05)(B, Sq, D)),
            "k_cache": _w((lambda *s: torch.randn(*s, dtype=torch.bfloat16) * 0.8)(B, Hkv, Sk, Dh)),
            "v_cache": _w((lambda *s: torch.randn(*s, dtype=torch.bfloat16) * 0.8)(B, Hkv, Sk, Dh)),
            "wq": _w((lambda *s: torch.randn(*s, dtype=torch.bfloat16) * 0.8)(D, Hq * Dh) * (D ** -0.5)),
            "wo": _w((lambda *s: torch.randn(*s, dtype=torch.bfloat16) * 0.8)(Hq * Dh, D) * ((Hq * Dh) ** -0.5)),
        }
    _A_in = _A_setup()

    def _B_setup():
        B, H, Sq, Sk, D, M = 1, 32, 1, 4096, 192, 640
        Dc = 4 * D
        return {
            "x": _w((lambda *s: torch.randn(*s, dtype=torch.bfloat16) * 0.05)(B, Sq, M)),
            "c_kv": _w((lambda *s: torch.randn(*s, dtype=torch.bfloat16) * 0.4)(B, Sk, Dc)),
            "w_q": _w((lambda *s: torch.randn(*s, dtype=torch.bfloat16) * 3.2)(M, H, D) * (M ** -0.5)),
            "w_uk": _w((lambda *s: torch.randn(*s, dtype=torch.bfloat16) * 3.2)(Dc, H, D) * (Dc ** -0.5)),
            "w_uv": _w((lambda *s: torch.randn(*s, dtype=torch.bfloat16) * 0.4)(Dc, H, D) * (Dc ** -0.5)),
            "w_o": _w((lambda *s: torch.randn(*s, dtype=torch.bfloat16) * 0.4)(H, D, M) * ((H * D) ** -0.5)),
        }
    _B_in = _B_setup()

    return {
        "A_x": _A_in["x"],
        "A_k_cache": _A_in["k_cache"],
        "A_v_cache": _A_in["v_cache"],
        "A_wq": _A_in["wq"],
        "A_wo": _A_in["wo"],
        "B_x": _B_in["x"],
        "B_c_kv": _B_in["c_kv"],
        "B_w_q": _B_in["w_q"],
        "B_w_uk": _B_in["w_uk"],
        "B_w_uv": _B_in["w_uv"],
        "B_w_o": _B_in["w_o"],
    }

def reference(A_x, A_k_cache, A_v_cache, A_wq, A_wo, B_x, B_c_kv, B_w_q, B_w_uk, B_w_uv, B_w_o):
    def _A_ref(x, k_cache, v_cache, wq, wo):
        B, Sq, D = x.shape
        Hq, Dh = 32, 192
        Hkv = k_cache.shape[1]
        rep = Hq // Hkv
        q = (lambda x, *d: x.permute(*d))((x @ wq).reshape(B, Sq, Hq, Dh), 0, 2, 1, 3)
        k = (lambda x, n, axis: torch.repeat_interleave(x, n, dim=axis))(k_cache, rep, axis=1)
        v = (lambda x, n, axis: torch.repeat_interleave(x, n, dim=axis))(v_cache, rep, axis=1)
        scores = torch.einsum("bhqd,bhkd->bhqk", q, k) * (Dh ** -0.5)
        p = _softmax(scores, axis=-1)
        o = torch.einsum("bhqk,bhkd->bhqd", p, v)
        return (lambda x, *d: x.permute(*d))(o, 0, 2, 1, 3).reshape(B, Sq, Hq * Dh) @ wo

    def _B_ref(x, c_kv, w_q, w_uk, w_uv, w_o):
        B, Sq, M = x.shape[0], x.shape[1], x.shape[2]
        Sk = c_kv.shape[1]
        H, D = w_q.shape[1], w_q.shape[2]
        q = torch.einsum("bqm,mhd->bhqd", x, w_q)
        k = torch.einsum("bkc,chd->bhkd", c_kv, w_uk)
        v = torch.einsum("bkc,chd->bhkd", c_kv, w_uv)
        scores = torch.einsum("bhqd,bhkd->bhqk", q, k) * (D ** -0.5)
        off = Sk - Sq
        qi = torch.arange(Sq)[:, None]
        kj = torch.arange(Sk)[None, :]
        cmask = kj <= (qi + off)
        scores = torch.where(cmask[None, None], scores, -1e9)
        p = _softmax(scores, axis=-1)
        ctx = torch.einsum("bhqk,bhkd->bhqd", p, v)
        return torch.einsum("bhqd,hdm->bqm", ctx, w_o)

    x = A_x
    x = x + _A_ref(_layernorm(x, axis=-1), A_k_cache, A_v_cache, A_wq, A_wo)
    x = x + _B_ref(_layernorm(x, axis=-1), B_c_kv, B_w_q, B_w_uk, B_w_uv, B_w_o)
    x = x + _A_ref(_layernorm(x, axis=-1), A_k_cache, A_v_cache, A_wq, A_wo)
    x = x + _B_ref(_layernorm(x, axis=-1), B_c_kv, B_w_q, B_w_uk, B_w_uv, B_w_o)
    return x
```

```python
import re

_REG = re.compile(r'^(-|\|)?(?:abs\()?([vas])(?:(\d+)|\[(\d+):(\d+)\])\)?\|?$')
TRANS = ('v_exp_f32', 'v_log_f32', 'v_rcp_f32', 'v_rsq_f32', 'v_sqrt_f32', 'v_sin_f32', 'v_cos_f32')


def regs(tok):
    tok = tok.strip()
    if tok in ('vcc', 'vcc_lo', 'vcc_hi'):
        return [('s', 'vcc')]
    if tok in ('exec', 'exec_lo', 'exec_hi'):
        return [('s', 'exec')]
    if tok == 'm0':
        return [('s', 'm0')]
    m = _REG.match(tok)
    if not m:
        return []
    k = m.group(2)
    if m.group(3) is not None:
        return [(k, int(m.group(3)))]
    return [(k, i) for i in range(int(m.group(4)), int(m.group(5)) + 1)]


def split_ops(rest):
    ops, depth, cur = [], 0, ''
    for ch in rest:
        if ch in '[(':
            depth += 1
        if ch in '])':
            depth -= 1
        if ch == ',' and depth == 0:
            ops.append(cur.strip()); cur = ''
        else:
            cur += ch
    if cur.strip():
        ops.append(cur.strip())
    mods = ''
    if ops:
        parts = ops[-1].split(None, 1)
        ops[-1] = parts[0]
        mods = parts[1] if len(parts) > 1 else ''
    return ops, mods


class Ins:
    __slots__ = ('text', 'op', 'kind', 'wr', 'rd', 'dpp', 'trans', 'A', 'B', 'C', 'D', 'wide', 'lds', 'lanesel', 'perm', 'rdlane', 'dsrc')

    def __init__(self, text):
        self.text = text
        p = text.split(None, 1)
        op = self.op = p[0]
        ops, mods = split_ops(p[1]) if len(p) > 1 else ([], '')
        self.wr, self.rd = [], []
        self.dpp = self.trans = self.wide = self.lds = self.perm = self.rdlane = False
        self.lanesel = []
        self.dsrc = []
        self.A = self.B = self.C = self.D = []
        R = [regs(o) for o in ops]
        flat = lambda l: [x for y in l for x in y]
        if op.startswith('v_mfma'):
            self.kind = 'mfma'
            self.D, self.A, self.B, self.C = R[0], R[1], R[2], R[3]
            self.wr = self.D; self.rd = self.A + self.B + self.C
        elif op.startswith('v_'):
            self.kind = 'valu'
            base = op.replace('_e32', '').replace('_e64', '').replace('_dpp', '')
            self.dpp = ('quad_perm' in text) or ('row_' in text) or ('wave_' in text)
            self.trans = base in TRANS
            if base.startswith('v_permlane') and base.endswith('swap_b32'):
                self.perm = True
                self.wr = R[0] + R[1]; self.rd = R[0] + R[1]
            elif base in ('v_add_co_u32', 'v_sub_co_u32', 'v_addc_co_u32'):
                self.wr = R[0] + R[1]; self.rd = flat(R[2:])
            elif base in ('v_readlane_b32', 'v_readfirstlane_b32'):
                self.rdlane = True
                self.wr = R[0]; self.rd = R[1]
                if len(R) > 2: self.lanesel = R[2]
            elif base == 'v_writelane_b32':
                self.wr = R[0]; self.rd = R[0] + R[1]; self.lanesel = R[2]
            elif base == 'v_nop':
                pass
            else:
                self.wr = R[0]; self.rd = flat(R[1:])
                if self.dpp: self.dsrc = R[1]
                if 'fmac' in base or self.dpp:
                    self.rd = self.rd + R[0]
        elif op.startswith('buffer_') or op.startswith('global_'):
            self.kind = 'vmem'
            allm = ' ' + mods + ' '
            if op in ('buffer_inv', 'buffer_wbl2'):
                pass
            elif ' lds ' in allm or 'load_lds' in op:
                self.lds = True
                self.rd = flat(R)
            elif '_load' in op:
                self.wr = R[0]; self.rd = flat(R[1:])
            elif op.startswith('buffer_store'):
                self.rd = flat(R); self.D = R[0]
                self.wide = len(R[0]) > 2
            elif op.startswith('global_store'):
                self.rd = flat(R); self.D = R[1]
                self.wide = len(R[1]) > 2
            else:
                self.rd = flat(R)
                if ' sc0 ' in allm: self.wr = R[0]
        elif op.startswith('ds_'):
            self.kind = 'ds'
            if 'read' in op or 'permute' in op or 'swizzle' in op:
                self.wr = R[0]; self.rd = flat(R[1:])
            else:
                self.rd = flat(R); self.D = flat(R[1:])
                self.wide = len(self.D) > 2
        elif op.startswith('s_'):
            self.kind = 'salu'
            nod = ('s_cmp', 's_cbranch', 's_waitcnt', 's_nop', 's_barrier', 's_sleep', 's_setprio', 's_branch',
                   's_endpgm', 's_bitcmp', 's_setpc')
            if not op.startswith(nod):
                self.wr = R[0] if R else []
                self.rd = flat(R[1:])
            else:
                self.rd = flat(R)
        else:
            raise ValueError('unknown instruction: ' + text)


class Asm:
    def __init__(self):
        self.items = []

    def __call__(self, text):
        for ln in text.split('\n'):
            ln = ln.split(';')[0].strip()
            if ln:
                self.items.append(ln)

    def label(self, name):
        self.items.append(name + ':')

    def flush(self):
        self.items.append('@FLUSH')

    def comment(self, c):
        self.items.append('; ' + c)

    def render(self):
        out = []
        pos = 0
        valu_wr, trans_wr, mfma_wr, mfma_c, st_data, sg_wr = {}, {}, {}, {}, {}, {}
        m0_wr = -100
        nnop = 0

        def reset():
            for d in (valu_wr, trans_wr, mfma_wr, mfma_c, st_data, sg_wr):
                d.clear()

        def pad(need):
            nonlocal pos, nnop
            n = need - pos
            while n > 0:
                k = min(n, 16)
                out.append(f'    s_nop {k - 1}')
                pos += k; n -= k; nnop += k

        for it in self.items:
            if it.startswith(';') or it.startswith('.'):
                out.append(it); continue
            if it.endswith(':'):
                out.append(it); continue
            if it == '@FLUSH':
                need = pos
                for d, w in ((valu_wr, 2), (trans_wr, 1), (mfma_c, 3), (st_data, 2), (sg_wr, 5)):
                    for p in d.values():
                        need = max(need, p + w + 1)
                for p, _ in mfma_wr.values():
                    need = max(need, p + 8 + 1)
                need = max(need, m0_wr + 2)
                pad(need)
                continue
            I = Ins(it)
            need = pos
            k = I.kind

            def req(p, w):
                nonlocal need
                need = max(need, p + w + 1)

            if k == 'mfma':
                for r in I.rd:
                    if r in valu_wr: req(valu_wr[r], 2)
                for r in I.A + I.B:
                    if r in mfma_wr: req(mfma_wr[r][0], 8)
                for r in I.C:
                    if r in mfma_wr:
                        if mfma_wr[r][1] != tuple(I.C): req(mfma_wr[r][0], 6)
                for r in I.D:
                    if r in mfma_wr and tuple(I.C) != mfma_wr[r][1]: req(mfma_wr[r][0], 6)
                    if r in st_data: req(st_data[r], 2)
            elif k == 'valu':
                for r in I.rd + I.wr:
                    if r in mfma_wr: req(mfma_wr[r][0], 8)
                for r in I.wr:
                    if r in mfma_c: req(mfma_c[r], 3)
                    if r in st_data: req(st_data[r], 2)
                for r in I.rd:
                    if r[0] == 's' and r in sg_wr: req(sg_wr[r], 2)
                    if r in trans_wr and not I.trans: req(trans_wr[r], 1)
                    if r in valu_wr:
                        if I.perm or r in I.dsrc: req(valu_wr[r], 2)
                        if I.rdlane: req(valu_wr[r], 1)
                for r in I.lanesel:
                    if r in sg_wr: req(sg_wr[r], 4)
            elif k in ('vmem', 'ds'):
                for r in I.rd + I.wr:
                    if r in mfma_wr: req(mfma_wr[r][0], 8)
                for r in I.rd:
                    if r[0] == 's' and r in sg_wr: req(sg_wr[r], 5)
                    if r in trans_wr: req(trans_wr[r], 1)
                for r in I.wr:
                    if r in st_data: req(st_data[r], 1)
                if I.lds: req(m0_wr, 1)
            pad(need)
            out.append('    ' + it)
            if k == 'mfma':
                for r in I.D: mfma_wr[r] = (pos, tuple(I.D))
                for r in I.C: mfma_c[r] = pos
            elif k == 'valu':
                for r in I.wr:
                    if r[0] == 's':
                        sg_wr[r] = pos
                    else:
                        valu_wr[r] = pos
                        if I.trans: trans_wr[r] = pos
                        else: trans_wr.pop(r, None)
            elif k in ('vmem', 'ds'):
                if I.wide:
                    for r in I.D: st_data[r] = pos
            elif k == 'salu':
                if ('s', 'm0') in I.wr: m0_wr = pos
                for r in I.wr: sg_wr.pop(r, None)
            if I.op == 's_nop':
                pos += int(it.split()[1], 0) + 1
            else:
                pos += 1
            if I.op in ('s_branch', 's_endpgm', 's_setpc_b64'):
                reset(); m0_wr = -100
        self.nnop = nnop
        return '\n'.join(out) + '\n'


class VM:
    def __init__(self, asm):
        self.a = asm
        self.q = []

    def issue(self, text, tag):
        self.a(text)
        self.q.append(tag)

    def wait(self, tag):
        idx = [i for i, t in enumerate(self.q) if t == tag]
        if not idx:
            return
        n = len(self.q) - 1 - idx[-1]
        self.a(f's_waitcnt vmcnt({min(n, 63)})')
        self.q = self.q[idx[-1] + 1:]

    def wait_all(self):
        self.a('s_waitcnt vmcnt(0)')
        self.q = []
```

```python
import sys, math, struct
from asmlib import Asm, VM

NAME = 'interleave_layers__gqa_block_cached__compressed_kv_cla__decode'
KB = 1024
LS = 8 << 20
QP, XN, ML, OP, YP, AEND = 0, 120 * KB, 136 * KB, 144 * KB, 240 * KB, 360 * KB
QL, PM, CM, CL, BEND = 360 * KB, 408 * KB, 440 * KB, 472 * KB, 856 * KB
PP = 1 << 20
MODE1 = 64 << 20
STAMPS = 128 << 20
CKV, WUV, WOB, WOA, PROW, SCR = 0, 0xC000, 0x15000, 0x1D000, 0x25000, 0x26000
LDS_SIZE = 0x28000

def f2u(x): return struct.unpack('<I', struct.pack('<f', x))[0]
CSC = f2u(192 ** -0.5 * math.log2(math.e))

sW, sX, sJ, sU, sLAY = 's3', 's4', 's5', 's6', 's7'
rK, rV, rWQA, rWOA, rCKV, rWQB, rWUK, rWUV, rWOB, rXIN, rOUT, rDBG, rWS = [f's[{8+4*i}:{11+4*i}]' for i in range(13)]
sBUD = 's60'
(sQPs, sQPl, sMLs, sMLl, sOPs, sOPl, sYPs, sYPl, sXNs, sXNl, sSTs, sSTl, sQLs, sQLl, sPMs, sPMl, sCMs, sCMl,
 sCLs, sCLl, sPPs, sPPl, sWQ, sUK, sE) = [f's{61+i}' for i in range(25)]
t0, t1, t2, t3 = 's86', 's87', 's98', 's99'
mX, mEV, mR, mQL, m1 = 's[88:89]', 's[90:91]', 's[92:93]', 's[94:95]', 's[100:101]'
(vLANE, vL16, vCK, vOA, vQB0, vQB1, vPR, vPW, vT64, vCT, vPPs, vRG, vML, vQW, vQLs, vG16, vL4, vL2, vXO, vXS,
 vTS, vSW, vI) = [f'v{1+i}' for i in range(23)]
def T(i, n=1): assert 0 <= i and i + n <= 32; return f'v{24+i}' if n == 1 else f'v[{24+i}:{24+i+n-1}]'
def F(i, n=1): assert 0 <= i and i + n <= 36; return f'v{56+i}' if n == 1 else f'v[{56+i}:{56+i+n-1}]'
def FA(i, n=1): return f'a{192+i}' if n == 1 else f'a[{192+i}:{192+i+n-1}]'
def KF(i): return f'a[{4*i}:{4*i+3}]'
def VF(f, o=0, n=4):
    if f < 41: b, k = 92 + 4 * f + o, 'v'
    else: b, k = 228 + 4 * (f - 41) + o, 'a'
    return f'{k}[{b}:{b+n-1}]'
DPPF = 'row_mask:0xf bank_mask:0xf'
MF = 'v_mfma_f32_16x16x32_bf16'


class Gen:
    def __init__(self, opt):
        self.a = Asm()
        self.opt = opt
        self.stubs = []
        self.uid = 0

    def stamp(self, k, now=False):
        if not self.opt.get('stamps'): return
        a = self.a
        a('s_waitcnt lgkmcnt(0)')
        a('v_writelane_b32 v0, s96, m0')
        a('s_memrealtime s[96:97]')
        a(f's_lshl_b32 m0, {sLAY}, 4')
        a(f's_or_b32 m0, m0, {k}')
        if now: self.stamp_flush()

    def stamp_flush(self):
        if not self.opt.get('stamps'): return
        self.a('s_waitcnt lgkmcnt(0)')
        self.a('v_writelane_b32 v0, s96, m0')

    def stamp_idle(self):
        if self.opt.get('stamps'): self.a('s_mov_b32 m0, 63')

    def try_label(self, name):
        n = f'{self.p}{name}'
        self.a.label(n + '_try')
        return n

    def check(self, n):
        self.a(f's_cbranch_vccnz {n}_rt')
        self.a.label(n + '_ok')
        self.stubs.append(n)

    def emit_stubs(self):
        a = self.a
        for n in self.stubs:
            a.label(n + '_rt')
            a(f's_sub_u32 {sBUD}, {sBUD}, 1')
            a('s_nop 7')
            a(f's_cbranch_scc0 {n}_try')
            a(f's_mov_b32 {sBUD}, 0')
            a(f's_branch {n}_ok')
        self.stubs = []

    def row_red(self, op, regs_, e=(8, 4, 2, 1)):
        for sh in e:
            for r in regs_:
                self.a(f'{op}_dpp {r}, {r}, {r} row_ror:{sh} {DPPF}')

    def cross(self, op, r, tmp, which):
        a = self.a
        a(f'v_mov_b32 {tmp}, {r}')
        a(f'v_permlane{which}_swap_b32 {r}, {tmp}')
        a(f'{op} {r}, {r}, {tmp}')

    def trace(self, dst, acc):
        a = self.a
        a(f'v_mov_b32_dpp {dst}, {acc(0)} quad_perm:[0,0,0,0] {DPPF}')
        for r in (1, 2, 3):
            a(f'v_add_f32_dpp {dst}, {acc(r)}, {dst} quad_perm:[{r},{r},{r},{r}] {DPPF}')

    def tr64(self, dst, addr, base=0):
        for t in range(4):
            for tau in range(2):
                for hf in range(2):
                    self.a(f'ds_read_b64_tr_b16 {dst(8*t+4*tau+2*hf, 2)}, {addr} offset:{base+2048*t+256*hf+32*tau}')

    def p_preset(self):
        a = self.a
        a(f'v_mov_b32 {T(28)}, 0x3f803f80')
        a(f'v_cmp_eq_u32 vcc, 1, {vI}')
        a(f'v_cndmask_b32 {T(0)}, 0, {T(28)}, vcc')
        for i in range(1, 16): a(f'v_mov_b32 {T(i)}, {T(0)}')
        for i in range(16, 20): a(f'v_mov_b32 {T(i)}, 0')

    def p_mfma(self, W, waits):
        a = self.a
        for t in range(4):
            if waits: a(waits[t])
            for tau in range(2):
                D = T(20 + 4 * tau, 4)
                a(f'{MF} {D}, {T(4*t,4)}, {W(8*t+4*tau,4)}, {D if t else 0}')

    def p_stats_fin(self):
        a = self.a
        a(f'v_mul_f32 {T(28)}, {hex(f2u(1/640))}, {T(28)}')
        a(f'v_mul_f32 {T(29)}, {hex(f2u(1/640))}, {T(29)}')
        a(f'v_fma_f32 {T(29)}, -{T(28)}, {T(28)}, {T(29)}')
        a(f's_mov_b32 {t0}, {hex(f2u(1e-5))}')
        a(f'v_add_f32 {T(29)}, {t0}, abs({T(29)})')
        a(f'v_rsq_f32 {T(29)}, {T(29)}')

    def p_out(self):
        a = self.a
        a(f'v_fma_f32 {T(30)}, -{T(28)}, {T(21)}, {T(20)}')
        a(f'v_fma_f32 {T(31)}, -{T(28)}, {T(25)}, {T(24)}')
        a(f'v_mul_f32 {T(30)}, {T(30)}, {T(29)}')
        a(f'v_mul_f32 {T(31)}, {T(31)}, {T(29)}')
        a(f'v_permlane16_swap_b32 {T(30)}, {T(31)}')
        a('s_mov_b32 exec_hi, 0')

    def stage_P(self, W, nm):
        a = self.a
        self.p_preset()
        n = self.try_label('P' + nm)
        a(f's_mov_b64 exec, {mX}')
        for t in range(4):
            a(f'buffer_load_dwordx4 {T(4*t,4)}, {vG16}, {rWS}, {sXNl} offen offset:{64*t} sc1')
        a('s_mov_b64 exec, 0x3ff')
        a(f'buffer_load_dwordx4 {T(16,4)}, {vL16}, {rWS}, {sSTl} offen sc1')
        a('s_mov_b64 exec, -1')
        self.p_mfma(W, [f's_waitcnt vmcnt({4-t}) lgkmcnt(0)' for t in range(4)])
        a('s_waitcnt vmcnt(0)')
        a(f'v_add_f32 {T(28)}, {T(16)}, {T(18)}')
        a(f'v_add_f32 {T(29)}, {T(17)}, {T(19)}')
        self.row_red('v_add_f32', [T(28), T(29)])
        self.p_stats_fin()
        self.p_out()
        a(f'v_cmp_u_f32 vcc, {T(30)}, {T(30)}')
        self.check(n)
        a(f'buffer_store_dword {T(30)}, {vL4}, {rWS}, {sQPs} offen {self.st}')
        a('s_mov_b64 exec, -1')

    def stage_Q(self, nm, vm=None, mid=None):
        a = self.a
        n = self.try_label('Q' + nm)
        a('s_mov_b32 exec_lo, -1')
        a('s_mov_b32 exec_hi, 0xffff')
        for k in range(5):
            a(f'buffer_load_dwordx4 {T(4*k,4)}, {vL16}, {rWS}, {sQPl} offen offset:{768*k} sc1')
        extra = 0
        if mid:
            a('s_mov_b64 exec, -1')
            extra = mid()
            a('s_mov_b32 exec_hi, 0xffff')
        for k in range(1, 5):
            a(f's_waitcnt vmcnt({4-k+extra})')
            a(f'v_pk_add_f32 {T(0,2)}, {T(0,2)}, {T(4*k,2)}')
            a(f'v_pk_add_f32 {T(2,2)}, {T(2,2)}, {T(4*k+2,2)}')
        a(f'v_cvt_pk_bf16_f32 {T(4)}, {T(0)}, {T(1)}')
        a(f'v_cvt_pk_bf16_f32 {T(5)}, {T(2)}, {T(3)}')
        a(f'ds_write_b64 {vQW}, {T(4,2)}')
        if not mid:
            a(f'v_add_f32 {T(6)}, {T(0)}, {T(1)}')
            a(f'v_add_f32 {T(7)}, {T(2)}, {T(3)}')
            a(f'v_cmp_u_f32 vcc, {T(6)}, {T(7)}')
            self.check(n)
        a('s_mov_b64 exec, -1')
        for par in range(2):
            for t in range(3):
                a(f'ds_read_b128 {T(8+4*(3*par+t),4)}, {vQB1 if par else vQB0} offset:{128*t}')

    def stage_QK(self):
        a = self.a
        acc = lambda Tn: (lambda r: F(4 * (Tn % 4) + r))
        S = lambda Tn: F(16 + Tn)
        a('s_waitcnt lgkmcnt(0)')
        for Tn in range(8):
            D = F(4 * (Tn % 4), 4)
            for par in range(2):
                for t in range(3):
                    first = par == 0 and t == 0
                    a(f'{MF} {D}, {KF((Tn*2+par)*3+t)}, {T(8+4*(3*par+t),4)}, {0 if first else D}')
                if par == 0 and Tn >= 2 or False:
                    pass
            if Tn >= 1:
                self.trace(S(Tn - 1), acc(Tn - 1))
        self.trace(S(7), acc(7))
        M, NM, TMP, L = F(24), F(25), F(26), F(27)
        a(f'v_max3_f32 {M}, {S(0)}, {S(1)}, {S(2)}')
        a(f'v_max3_f32 {M}, {M}, {S(3)}, {S(4)}')
        a(f'v_max3_f32 {M}, {M}, {S(5)}, {S(6)}')
        a(f'v_max_f32 {M}, {M}, {S(7)}')
        self.row_red('v_max_f32', [M], (4, 8))
        self.cross('v_max_f32', M, TMP, 16)
        self.cross('v_max_f32', M, TMP, 32)
        a(f's_mov_b32 {t0}, {hex(CSC)}')
        a(f'v_mul_f32 {F(28)}, {t0}, {M}')
        for Tn in range(8):
            a(f'v_fma_f32 {S(Tn)}, {S(Tn)}, {t0}, -{F(28)}')
        for Tn in range(8):
            a(f'v_exp_f32 {S(Tn)}, {S(Tn)}')
        for k in range(4):
            a(f'v_cvt_pk_bf16_f32 {F(k)}, {S(2*k)}, {S(2*k+1)}')
        a(f'ds_write_b128 {vPW}, {F(0,4)}')
        a(f'v_add_f32 {F(29)}, {S(0)}, {S(1)}')
        for Tn in range(2, 8):
            a(f'v_add_f32 {F(29)}, {F(29)}, {S(Tn)}')
        self.row_red('v_add_f32', [F(29)], (4, 8))
        self.cross('v_add_f32', F(29), TMP, 16)
        self.cross('v_add_f32', F(29), TMP, 32)
        a('s_mov_b64 exec, 1')
        a(f'buffer_store_dwordx2 {F(28,2)}, {vL4}, {rWS}, {sMLs} offen {self.st}')
        a('s_mov_b64 exec, -1')

    def op_publish(self, R, TMP):
        a = self.a
        a(f'v_mov_b32_dpp {TMP}, {R} row_shl:1 {DPPF}')
        a(f'v_cvt_pk_bf16_f32 {R}, {R}, {TMP}')
        a(f's_mov_b64 exec, {mEV}')
        a(f'buffer_store_dword {R}, {vL2}, {rWS}, {sOPs} offen {self.st}')
        a('s_mov_b64 exec, -1')

    def stage_PV(self):
        a = self.a
        a('s_waitcnt lgkmcnt(0)')
        a('s_barrier')
        for t in range(8):
            a(f'ds_read_b128 {F(4*t,4)}, {vPR} offset:{64*t}')
        for t in range(16):
            a(f's_waitcnt lgkmcnt({min(7, 15-t)})')
            for tau in range(3):
                D = T(4 * tau, 4)
                a(f'{MF} {D}, {F(4*(t%8),4)}, {VF(3*t+tau)}, {D if t else 0}')
            if t + 8 < 16:
                a(f'ds_read_b128 {F(4*(t%8),4)}, {vPR} offset:{64*(t+8)}')
        n = self.try_label('ML')
        a(f'buffer_load_dwordx4 {T(12,4)}, {vML}, {rWS}, {sMLl} offen sc1')
        a('s_waitcnt vmcnt(0)')
        a(f'v_max_f32 {T(16)}, {T(12)}, {T(14)}')
        self.row_red('v_max_f32', [T(16)])
        a(f'v_sub_f32 {T(17)}, {T(12)}, {T(16)}')
        a(f'v_sub_f32 {T(18)}, {T(14)}, {T(16)}')
        a(f'v_exp_f32 {T(17)}, {T(17)}')
        a(f'v_exp_f32 {T(18)}, {T(18)}')
        a(f'v_mul_f32 {T(19)}, {T(17)}, {T(13)}')
        a(f'v_fmac_f32 {T(19)}, {T(18)}, {T(15)}')
        self.row_red('v_add_f32', [T(19)])
        a(f'v_cmp_u_f32 vcc, {T(19)}, {T(19)}')
        self.check(n)
        a(f'v_rcp_f32 {T(19)}, {T(19)}')
        for tau in range(3):
            rm = f'row_mask:{hex(1<<tau)} bank_mask:0xf'
            a(f'v_mul_f32_dpp {T(20)}, {T(17)}, {T(4*tau)} row_newbcast:0 {rm}')
        for r, (src, ln) in enumerate(((17, 0), (18, 0), (17, 1), (18, 1))):
            if r == 0: continue
            for tau in range(3):
                rm = f'row_mask:{hex(1<<tau)} bank_mask:0xf'
                a(f'v_fmac_f32_dpp {T(20)}, {T(src)}, {T(4*tau+r)} row_newbcast:{ln} {rm}')
        a(f'v_mul_f32 {T(20)}, {T(20)}, {T(19)}')
        self.op_publish(T(20), T(21))

    def stage_O(self):
        a = self.a
        a(f's_and_b32 {t0}, {sLAY}, 1')
        a(f's_xor_b32 {t0}, {t0}, 1')
        a(f's_lshl_b32 {t0}, {t0}, 15')
        a(f'v_add_u32 {T(24)}, {t0}, {vT64}')
        self.tr64(F, T(24))
        n = self.try_label('O')
        a('s_mov_b64 exec, -1')
        for t in range(4):
            a(f'buffer_load_dwordx4 {T(4*t,4)}, {vOA}, {rWS}, {sOPl} offen offset:{64*t} sc1')
        for t in range(4):
            a(f's_waitcnt vmcnt({3-t}) lgkmcnt(0)')
            for tau in range(2):
                D = T(16 + 4 * tau, 4)
                a(f'{MF} {D}, {T(4*t,4)}, {F(8*t+4*tau,4)}, {D if t else 0}')
        a(f'v_pk_add_f32 {T(16,2)}, {T(16,2)}, {T(18,2)}')
        a(f'v_pk_add_f32 {T(20,2)}, {T(20,2)}, {T(22,2)}')
        a(f'v_add_f32 {T(16)}, {T(16)}, {T(17)}')
        a(f'v_add_f32 {T(20)}, {T(20)}, {T(21)}')
        a(f'v_permlane16_swap_b32 {T(16)}, {T(20)}')
        a(f'v_add_f32 {T(16)}, {T(16)}, {T(20)}')
        a('s_mov_b32 exec_hi, 0')
        a(f'v_cmp_u_f32 vcc, {T(16)}, {T(16)}')
        self.check(n)
        a(f'buffer_store_dword {T(16)}, {vL4}, {rWS}, {sYPs} offen sc1')
        a('s_mov_b64 exec, -1')

    def stage_E(self):
        a = self.a
        a(f's_add_u32 {t0}, {sYPl}, 4096')
        n = self.try_label('E')
        a('s_mov_b64 exec, -1')
        for k in range(6):
            so, off = (sYPl, 1024 * k) if k < 4 else (t0, 1024 * (k - 4))
            a(f'buffer_load_dwordx4 {T(4*k,4)}, {vL16}, {rWS}, {so} offen offset:{off} sc1')
        for k in range(1, 6):
            a(f's_waitcnt vmcnt({5-k})')
            a(f'v_pk_add_f32 {T(0,2)}, {T(0,2)}, {T(4*k,2)}')
            a(f'v_pk_add_f32 {T(2,2)}, {T(2,2)}, {T(4*k+2,2)}')
        a(f'v_permlane16_swap_b32 {T(0)}, {T(1)}')
        a(f'v_permlane16_swap_b32 {T(2)}, {T(3)}')
        a(f'v_add_f32 {T(0)}, {T(0)}, {T(1)}')
        a(f'v_add_f32 {T(2)}, {T(2)}, {T(3)}')
        a(f'v_permlane32_swap_b32 {T(0)}, {T(2)}')
        a(f'v_add_f32 {T(0)}, {T(0)}, {T(2)}')
        a(f'v_add_f32_dpp {T(0)}, {T(0)}, {T(0)} row_ror:8 {DPPF}')
        a(f'v_cmp_u_f32 vcc, {T(0)}, {T(0)}')
        self.check(n)
        a(f'v_add_f32 {T(0)}, {T(0)}, {vXO}')
        a(f'v_cvt_pk_bf16_f32 {T(0)}, {T(0)}, {T(0)}')
        a('s_mov_b32 exec_lo, 0x00ff00ff')
        a('s_mov_b32 exec_hi, 0x00ff00ff')
        a(f's_cmp_eq_u32 {sLAY}, 3')
        a.flush()
        a(f's_cbranch_scc1 {self.p}final')
        a(f'buffer_store_short {T(0)}, {vXS}, {rWS}, {sXNs} offen {self.st}')
        a('s_mov_b64 exec, -1')
        a(f'v_and_b32 {vXO}, 0xffff0000, {T(0)}')
        a(f'v_mov_b32 {T(1)}, {vXO}')
        a(f'v_mul_f32 {T(2)}, {vXO}, {vXO}')
        a(f'v_permlane16_swap_b32 {T(1)}, {T(2)}')
        a(f'v_add_f32 {T(1)}, {T(1)}, {T(2)}')
        self.cross('v_add_f32', T(1), T(2), 32)
        self.row_red('v_add_f32', [T(1)], (4, 2, 1))
        a(f'v_lshrrev_b32 {T(3)}, 2, {vG16}')
        a('s_mov_b64 exec, 0x10001')
        a(f'buffer_store_dword {T(1)}, {T(3)}, {rWS}, {sSTs} offen {self.st}')
        a('s_mov_b64 exec, -1')

    def w12(self, dst):
        a = self.a
        a(f'v_lshrrev_b32 {dst}, 2, {vLANE}')
        a(f'v_mul_u32_u24 {dst}, 12288, {dst}')
        a(f'v_and_b32 {T(31)}, 3, {vLANE}')
        a(f'v_lshl_add_u32 {dst}, {T(31)}, 4, {dst}')

    def uk_addr(self, da, db):
        a = self.a
        a(f'v_bfe_u32 {T(30)}, {vLANE}, 2, 2')
        a(f'v_lshrrev_b32 {T(31)}, 5, {vLANE}')
        a(f'v_lshl_add_u32 {da}, {T(30)}, 2, {T(31)}')
        a(f'v_lshl_add_u32 {db}, {T(30)}, 1, {T(31)}')
        a(f'v_mul_u32_u24 {da}, 12288, {da}')
        a(f'v_mul_u32_u24 {db}, 12288, {db}')
        a(f'v_and_b32 {T(30)}, 16, {vLANE}')
        a(f'v_and_b32 {T(31)}, 3, {vLANE}')
        a(f'v_lshlrev_b32 {T(30)}, 2, {T(30)}')
        a(f'v_lshl_add_u32 {T(30)}, {T(31)}, 4, {T(30)}')
        a(f'v_add_u32 {da}, {da}, {T(30)}')
        a(f'v_add_u32 {db}, {db}, {T(30)}')

    def uk_loads(self, da, db, dst, issue, fl):
        a = self.a
        a(f's_add_u32 {t0}, {sUK}, {2*12288}')
        a(f's_add_u32 {t1}, {sUK}, {16*12288}')
        for tile, (va, so) in enumerate(((da, sUK), (da, t0), (db, t1))):
            for t in range(3):
                issue(f'buffer_load_dwordx4 {dst(4*(3*tile+t))}, {va}, {rWUK}, {so} offen offset:{128*t} {fl}')

    def fill_wqb(self):
        a = self.a
        self.w12(T(28))
        a(f's_mov_b32 {t0}, {sWQ}')
        for q in range(8):
            a(f'buffer_load_dwordx4 {F(4*q,4)}, {T(28)}, {rWQB}, {t0} offen nt')
            if q < 7: a(f's_add_u32 {t0}, {t0}, {16*12288}')
        for t in range(4):
            a(f's_waitcnt vmcnt({7-2*t})')
            a(f'ds_write_b128 {vSW}, {F(8*t,4)}')
            a(f's_waitcnt vmcnt({6-2*t})')
            a(f'ds_write_b128 {vSW}, {F(8*t+4,4)} offset:1024')
            for tau in range(2):
                for hf in range(2):
                    a(f'ds_read_b64_tr_b16 {F(8*t+4*tau+2*hf,2)}, {vTS} offset:{256*hf+32*tau}')

    def pp_stores(self, data, extra, grp_list=(0, 1, 2)):
        pass

    def clear_pp(self, issue=None):
        a = self.a
        issue = issue or a
        a(f'v_mov_b32 {F(32)}, -1')
        a(f'v_mov_b32 {F(33)}, -1')
        for r in range(4):
            a(f's_add_u32 {t0}, {sPPs}, {LS + r*24576}')
            for grp in range(3):
                issue(f'buffer_store_dwordx2 {F(32,2)}, {vPPs}, {rWS}, {t0} offen offset:{128*grp} {self.st}')

    def stage_UK(self):
        a = self.a
        a('s_waitcnt lgkmcnt(0)')
        for t in range(3):
            a(f'{MF} {T(4,4)}, {F(24+4*t,4)}, {T(8+4*t,4)}, {T(4,4) if t else 0}')
        for par in range(2):
            for t in range(3):
                first = par == 0 and t == 0
                a(f'{MF} {T(0,4)}, {F(4*(3*par+t),4)}, {T(8+4*(3*par+t),4)}, {0 if first else T(0,4)}')
        a(f's_mov_b32 {t0}, {hex(CSC)}')
        self.trace(T(9), lambda r: T(4 + r))
        a(f'v_mul_f32 {T(9)}, {t0}, {T(9)}')
        a(f'v_mov_b32_dpp {T(11)}, {T(9)} row_shl:4 {DPPF}')
        a(f'v_cvt_pk_bf16_f32 {T(9)}, {T(9)}, {T(11)}')
        self.trace(T(8), lambda r: T(r))
        a(f'v_mul_f32 {T(8)}, {t0}, {T(8)}')
        a(f'v_mov_b32_dpp {T(10)}, {T(8)} row_shl:4 {DPPF}')
        a(f'v_cvt_pk_bf16_f32 {T(8)}, {T(8)}, {T(10)}')
        a(f'v_cndmask_b32 {T(8)}, {T(8)}, {T(9)}, {m1}')
        a(f's_mov_b64 exec, {mQL}')
        a(f'buffer_store_dword {T(8)}, {vQLs}, {rWS}, {sQLs} offen sc1')
        a('s_mov_b64 exec, -1')

    def stage_S(self):
        a = self.a
        a(f's_mul_i32 {t0}, {sW}, 12288')
        if self.opt.get('dQL'): a(f's_sleep {self.opt["dQL"]}')
        n = self.try_label('S')
        AD = T(31)
        order = [(t6, tau) for t6 in range(6) for tau in range(2)]
        a(f'v_add_u32 {AD}, {t0}, {vL16}')
        for k in range(9):
            t6, tau = order[k]
            a(f'ds_read_b128 {F(4*k,4)}, {AD} offset:{CKV+(6*tau+t6)*1024}')
        for t6 in range(6):
            a(f'buffer_load_dwordx4 {T(4*t6,4)}, {vCK}, {rWS}, {sQLl} offen offset:{64*t6} sc1')
        for k in range(12):
            t6, tau = order[k]
            D = T(24 + 4 * tau, 4)
            if tau == 0:
                a(f's_waitcnt vmcnt({5-t6})' + (' lgkmcnt(0)' if k == 0 else ''))
            if k == 9: a('s_waitcnt lgkmcnt(0)')
            a(f'{MF} {D}, {F(4*(k%9),4)}, {T(4*t6,4)}, {D if t6 else 0}')
            if k == 2:
                a(f'v_add_u32 {T(0)}, {t0}, {vL16}')
                for kk in range(9, 12):
                    t6b, taub = order[kk]
                    a(f'ds_read_b128 {F(4*(kk%9),4)}, {T(0)} offset:{CKV+(6*taub+t6b)*1024}')
        a(f'v_cmp_u_f32 vcc, {T(24)}, {T(28)}')
        self.check(n)
        a(f'ds_write_b128 {vSW}, {T(24,4)}')
        a(f'ds_write_b128 {vSW}, {T(28,4)} offset:1024')
        a(f'v_add_u32 {T(0)}, {SCR}, {vL16}')
        a('s_waitcnt lgkmcnt(0)')
        a('s_barrier')
        for w in (3, 2, 1, 0):
            for tau in (1, 0):
                a(f'ds_read_b128 {T(8*w+4*tau,4)}, {T(0)} offset:{2048*w+1024*tau}')
        def trfrag(Tt, dst):
            for hf in range(2):
                a(f'ds_read_b64_tr_b16 {dst(2*hf)}, {vCT} offset:{CKV+6144*hf+1024*(Tt>>1)+512*(Tt&1)}')
        for Tt in range(3):
            trfrag(Tt, lambda o, Tt=Tt: F(4 * Tt + o, 2))
        a('s_waitcnt lgkmcnt(6)')
        for Tt in range(3, 7):
            trfrag(Tt, lambda o, Tt=Tt: F(4 * Tt + o, 2))
        for i in range(0, 8, 2):
            a(f'v_pk_add_f32 {T(i,2)}, {T(i,2)}, {T(8+i,2)}')
            a(f'v_pk_add_f32 {T(16+i,2)}, {T(16+i,2)}, {T(24+i,2)}')
        for i in range(0, 8, 2):
            a(f'v_pk_add_f32 {T(i,2)}, {T(i,2)}, {T(16+i,2)}')
        a('s_waitcnt lgkmcnt(4)')
        for Tt in range(7, 9):
            trfrag(Tt, lambda o, Tt=Tt: F(4 * Tt + o, 2))
        for Tt in range(9, 12):
            trfrag(Tt, lambda o, Tt=Tt: T(20 + 4 * (Tt - 9) + o, 2))
        N, TMP, L = T(12), T(14), T(13)
        a(f'v_max3_f32 {N}, {T(0)}, {T(1)}, {T(2)}')
        a(f'v_max3_f32 {N}, {N}, {T(3)}, {T(4)}')
        a(f'v_max3_f32 {N}, {N}, {T(5)}, {T(6)}')
        a(f'v_max_f32 {N}, {N}, {T(7)}')
        self.cross('v_max_f32', N, TMP, 16)
        self.cross('v_max_f32', N, TMP, 32)
        a(f'v_ceil_f32 {N}, {N}')
        a(f'v_lshlrev_b32 {T(15)}, 7, {vI}')
        a('s_mov_b64 exec, 0xffff')
        a(f'buffer_store_dword {N}, {T(15)}, {rWS}, {sPMs} offen {self.st}')
        a('s_mov_b64 exec, -1')
        for i in range(8): a(f'v_sub_f32 {T(i)}, {T(i)}, {N}')
        for i in range(8): a(f'v_exp_f32 {T(i)}, {T(i)}')
        for k in range(4): a(f'v_cvt_pk_bf16_f32 {T(8+k)}, {T(2*k)}, {T(2*k+1)}')
        a(f'v_add_f32 {L}, {T(0)}, {T(1)}')
        for i in range(2, 8): a(f'v_add_f32 {L}, {L}, {T(i)}')
        self.cross('v_add_f32', L, TMP, 16)
        self.cross('v_add_f32', L, TMP, 32)
        a('s_mov_b64 exec, 0xffff')
        a(f'buffer_store_dword {L}, {T(15)}, {rWS}, {sPMs} offen offset:4 {self.st}')
        a('s_mov_b64 exec, -1')
        frag = lambda Tt: (lambda o=0, n=4: F(4 * Tt + o, n) if Tt < 9 else T(20 + 4 * (Tt - 9) + o, n))
        def dreg(Tt):
            if Tt < 4:
                b = (0, 4, 12, 16)[Tt]
                return lambda o=0, n=4: T(b + o, n)
            return frag(Tt - 4)
        a('s_waitcnt lgkmcnt(0)')
        for r in range(1, 4):
            a(f's_add_u32 {(t1, t2, t3)[r-1]}, {sPPs}, {r*24576}')
        so = (sPPs, t1, t2, t3)
        def pack(grp):
            A_, B_, C_, D_ = [dreg(4 * grp + i) for i in range(4)]
            for h2 in (0, 2):
                a(f'v_cvt_pk_bf16_f32 {A_(h2,1)}, {A_(h2,1)}, {B_(h2,1)}')
                a(f'v_cvt_pk_bf16_f32 {B_(h2,1)}, {A_(h2+1,1)}, {B_(h2+1,1)}')
                a(f'v_cvt_pk_bf16_f32 {A_(h2+1,1)}, {C_(h2,1)}, {D_(h2,1)}')
                a(f'v_cvt_pk_bf16_f32 {B_(h2+1,1)}, {C_(h2+1,1)}, {D_(h2+1,1)}')
                a(f'buffer_store_dwordx2 {A_(h2,2)}, {vPPs}, {rWS}, {so[h2]} offen offset:{128*grp} {self.st}')
                a(f'buffer_store_dwordx2 {B_(h2,2)}, {vPPs}, {rWS}, {so[h2+1]} offen offset:{128*grp} {self.st}')
        for Tt in range(12):
            a(f'{MF} {dreg(Tt)()}, {T(8,4)}, {frag(Tt)()}, 0')
        for grp in range(3): pack(grp)
        a('s_barrier')

    def stage_R(self):
        a = self.a
        AD = T(31)
        a(f'v_lshrrev_b32 {T(30)}, 2, {vI}')
        a(f'v_lshrrev_b32 {AD}, 4, {vLANE}')
        a(f'v_add_u32 {T(30)}, {T(30)}, {AD}')
        a(f'v_and_b32 {T(30)}, 3, {T(30)}')
        a(f'v_and_b32 {AD}, 3, {vI}')
        a(f'v_lshl_add_u32 {AD}, {AD}, 2, {T(30)}')
        a(f'v_lshlrev_b32 {AD}, 3, {AD}')
        a(f'v_and_b32 {T(30)}, 1, {vI}')
        a(f'v_lshlrev_b32 {T(30)}, 4, {T(30)}')
        a(f'v_mov_b32 {T(29)}, 0xffff')
        a(f'v_lshlrev_b32 {T(29)}, {T(30)}, {T(29)}')
        a(f'v_bfe_u32 {T(30)}, {vI}, 1, 2')
        for r in range(4):
            a(f'v_cmp_eq_u32 vcc, {r}, {T(30)}')
            a(f'v_cndmask_b32 {T(24+r)}, 0, {T(29)}, vcc')
        n = self.try_label('RM')
        a(f'buffer_load_dwordx2 {T(16,2)}, {AD}, {rWS}, {sPMl} offen sc1')
        a('s_waitcnt vmcnt(0)')
        N, AL, L = T(18), T(20), T(19)
        a(f'v_mov_b32 {N}, {T(16)}')
        self.row_red('v_max_f32', [N])
        a(f'v_sub_f32 {AL}, {T(16)}, {N}')
        a(f'v_exp_f32 {AL}, {AL}')
        a(f'v_mul_f32 {L}, {AL}, {T(17)}')
        self.row_red('v_add_f32', [L])
        a(f'v_cmp_u_f32 vcc, {L}, {L}')
        self.check(n)
        a('s_mov_b64 exec, 1')
        a(f'buffer_store_dwordx2 {T(18,2)}, {vL4}, {rWS}, {sCMs} offen sc1')
        a('s_mov_b64 exec, -1')
        a(f'v_cvt_pk_bf16_f32 {AL}, {AL}, {AL}')
        for pg in range(4):
            for r in range(4):
                a(f'v_and_b32_dpp {T(4*pg+r)}, {AL}, {T(24+r)} row_newbcast:{pg} {DPPF}')
        for pg in range(1, 4):
            a(f's_add_u32 {(t1, t2, t3)[pg-1]}, {sPPl}, {pg*6144}')
        so = (sPPl, t1, t2, t3)
        a(f'v_lshrrev_b32 {T(30)}, 4, {vLANE}')
        a(f'v_mul_u32_u24 {T(30)}, 192, {T(30)}')
        a(f'v_lshl_add_u32 {T(30)}, {vI}, 4, {T(30)}')
        n = self.try_label('R')
        a(f's_mov_b64 exec, {mR}')
        for pg in range(4):
            for b in range(2):
                a(f'buffer_load_dwordx4 {F(4*(2*pg+b),4)}, {vRG}, {rWS}, {so[pg]} offen offset:{192*b} sc1')
        for pg in range(4):
            for b in range(2):
                a(f's_waitcnt vmcnt({7-2*pg-b})')
                D = T(16 + 4 * b, 4)
                a(f'{MF} {D}, {T(4*pg,4)}, {F(4*(2*pg+b),4)}, {D if pg else 0}')
        a(f'v_cmp_u_f32 vcc, {T(16)}, {T(20)}')
        self.check(n)
        a('s_mov_b64 exec, -1')
        a(f'v_cvt_pk_bf16_f32 {T(24)}, {T(16)}, {T(17)}')
        a(f'v_cvt_pk_bf16_f32 {T(25)}, {T(18)}, {T(19)}')
        a(f'v_cvt_pk_bf16_f32 {T(26)}, {T(20)}, {T(21)}')
        a(f'v_cvt_pk_bf16_f32 {T(27)}, {T(22)}, {T(23)}')
        a(f'v_permlane16_swap_b32 {T(24)}, {T(26)}')
        a(f'v_permlane16_swap_b32 {T(25)}, {T(27)}')
        a('s_mov_b64 exec, 0x0fff0fff')
        a(f'buffer_store_dwordx4 {T(24,4)}, {T(30)}, {rWS}, {sCLs} offen sc1')
        a('s_mov_b64 exec, -1')

    def stage_UV(self):
        a = self.a
        AD = T(31)
        a(f'v_lshrrev_b32 {AD}, 4, {vLANE}')
        a(f'v_bfe_u32 {T(30)}, {vLANE}, 2, 2')
        a(f'v_lshl_add_u32 {AD}, {AD}, 3, {T(30)}')
        a(f'v_mul_u32_u24 {AD}, 96, {AD}')
        a(f'v_and_b32 {T(30)}, 3, {vLANE}')
        a(f'v_lshl_add_u32 {AD}, {T(30)}, 3, {AD}')
        a(f's_mul_i32 {t0}, {sW}, 9216')
        a(f's_add_u32 {t0}, {t0}, {WUV}')
        a(f'v_add_u32 {AD}, {t0}, {AD}')
        for t in range(3):
            for tau in range(3):
                for hf in range(2):
                    a(f'ds_read_b64_tr_b16 {F(12*t+4*tau+2*hf,2)}, {AD} offset:{3072*t+384*hf+32*tau}')
        a(f'v_lshrrev_b32 {T(30)}, 2, {vLANE}')
        a(f'v_and_b32 {T(30)}, 4, {T(30)}')
        a(f'v_add_u32 {T(30)}, {T(30)}, {vI}')
        a(f'v_and_b32 {T(30)}, 7, {T(30)}')
        a(f'v_lshlrev_b32 {T(30)}, 7, {T(30)}')
        if self.opt.get('dCL'): a(f's_sleep {self.opt["dCL"]}')
        n = self.try_label('UV')
        a(f'buffer_load_dwordx2 {T(24,2)}, {T(30)}, {rWS}, {sCMl} offen sc1')
        for t in range(3):
            a(f'buffer_load_dwordx4 {T(4*t,4)}, {vOA}, {rWS}, {sCLl} offen offset:{64*t} sc1')
        for t in range(3):
            a(f's_waitcnt vmcnt({2-t}) lgkmcnt(0)')
            for tau in range(3):
                D = T(12 + 4 * tau, 4)
                a(f'{MF} {D}, {T(4*t,4)}, {F(12*t+4*tau,4)}, {D if t else 0}')
        N, G, L = T(26), T(27), T(28)
        a(f'v_mov_b32 {N}, {T(24)}')
        self.row_red('v_max_f32', [N], (4, 2, 1))
        a(f'v_sub_f32 {G}, {T(24)}, {N}')
        a(f'v_exp_f32 {G}, {G}')
        a(f'v_mul_f32 {L}, {G}, {T(25)}')
        self.row_red('v_add_f32', [L], (4, 2, 1))
        a(f'v_rcp_f32 {L}, {L}')
        Z, Y = T(0), T(1)
        for r in range(4):
            op = 'v_mul_f32_dpp' if r == 0 else 'v_fmac_f32_dpp'
            a(f'{op} {Z}, {G}, {T(12+r)} row_newbcast:{r} row_mask:0x3 bank_mask:0xf')
            a(f'{op} {Y}, {G}, {T(16+r)} row_newbcast:{r} {DPPF}')
            a(f'{op} {Z}, {G}, {T(20+r)} row_newbcast:{r} row_mask:0xc bank_mask:0xf')
        a(f'v_permlane16_swap_b32 {Z}, {Y}')
        a(f'v_add_f32 {Z}, {Z}, {Y}')
        a(f'v_mul_f32 {Z}, {Z}, {L}')
        a(f'v_cmp_u_f32 vcc, {Z}, {Z}')
        self.check(n)
        self.op_publish(Z, Y)

    def body(self, mode):
        a = self.a
        self.p = p = f'm{mode}_'
        self.st = 'sc1' if mode else ''
        opt = self.opt
        a.label(p + 'start')
        if mode == 0:
            a(f's_getreg_b32 {t3}, hwreg(HW_REG_XCC_ID, 0, 4)')
            a(f's_and_b32 {sX}, {t3}, 7')
            a(f's_lshr_b32 {sJ}, s2, 3')
        else:
            a(f's_mov_b32 {t3}, 0')
            a(f's_lshr_b32 {sX}, s2, 5')
            a(f's_and_b32 {sJ}, s2, 31')
            a(f's_add_u32 s56, s56, {MODE1}')
            a('s_addc_u32 s57, s57, 0')
        a(f's_mov_b32 {sLAY}, 0')
        a(f's_lshl_b32 {sU}, {sJ}, 2')
        a(f's_add_u32 {sU}, {sU}, {sW}')
        a(f's_sub_u32 {t0}, {sU}, 8')
        a(f's_cmp_ge_u32 {sU}, 120')
        a(f's_cselect_b32 {sU}, {t0}, {sU}')
        a(f's_mul_i32 {t0}, {sU}, 2731')
        a(f's_lshr_b32 {t0}, {t0}, 16')
        a(f's_mul_i32 {t1}, {t0}, 24')
        a(f's_sub_u32 {t1}, {sU}, {t1}')
        a(f's_mul_i32 {sWQ}, {t0}, {128*12288}')
        a(f's_mul_i32 {t2}, {sX}, 1536')
        a(f's_add_u32 {sWQ}, {sWQ}, {t2}')
        a(f's_lshl_b32 {t2}, {t1}, 6')
        a(f's_add_u32 {sWQ}, {sWQ}, {t2}')
        vm = VM(a)
        self.w12(T(28))
        a(f's_lshl_b32 {sE}, {sW}, 13')
        a(f's_add_u32 {sE}, {sE}, {WOB}')
        a(f's_mov_b32 {sUK}, {sWQ}')
        a('s_waitcnt lgkmcnt(0)')
        for q in range(8):
            a(f's_mov_b32 m0, {sE}')
            vm.issue(f'buffer_load_dwordx4 {T(28)}, {rWQA}, {sUK} offen nt lds', 'wqa')
            if q < 7:
                a(f's_add_u32 {sE}, {sE}, 1024')
                a(f's_add_u32 {sUK}, {sUK}, {16*12288}')
        self.stamp_idle()
        a(f's_lshl_b32 {sXNl}, {t0}, 8')
        a(f's_mul_i32 {sQPs}, {t0}, 768')
        a(f's_mul_i32 {t2}, {t1}, 10923')
        a(f's_lshr_b32 {t2}, {t2}, 16')
        a(f's_mul_i32 {t0}, {t2}, {3840-768}')
        a(f's_add_u32 {sQPs}, {sQPs}, {t0}')
        a(f's_lshl_b32 {t0}, {t1}, 7')
        a(f's_add_u32 {sQPs}, {sQPs}, {t0}')
        a(f's_mul_i32 {t0}, {sX}, 15360')
        a(f's_add_u32 {sQPs}, {sQPs}, {t0}')
        self.p_preset()
        a(f's_mov_b64 exec, {mX}')
        for t in range(4):
            vm.issue(f'buffer_load_dwordx4 {T(4*t,4)}, {vG16}, {rXIN}, {sXNl} offen offset:{64*t}', 'x')
        a('s_mov_b64 exec, -1')
        vm.issue(f'buffer_load_dwordx4 {F(0,4)}, {vL16}, {rXIN}, 0 offen', 'x')
        vm.issue(f'buffer_load_dwordx4 {F(4,4)}, {vL16}, {rXIN}, 0 offen offset:1024', 'x')
        a(f's_lshl_b32 {sE}, {sW}, 8')
        a(f's_add_u32 {sE}, {sE}, {sJ}')
        a(f's_min_u32 {t0}, {sE}, 19')
        a(f's_lshl_b32 {t0}, {t0}, 6')
        vm.issue(f'buffer_load_ushort {vXO}, {vXS}, {rXIN}, {t0} offen', 'x')
        KA = T(29)
        a(f'v_bfe_u32 {T(30)}, {vLANE}, 2, 2')
        a(f'v_lshrrev_b32 {T(31)}, 5, {vLANE}')
        a(f'v_lshl_add_u32 {KA}, {T(30)}, 2, {T(31)}')
        a(f'v_mul_u32_u24 {KA}, 3072, {KA}')
        a(f'v_and_b32 {T(30)}, 16, {vLANE}')
        a(f'v_lshl_add_u32 {KA}, {T(30)}, 2, {KA}')
        a(f'v_and_b32 {T(31)}, 3, {vLANE}')
        a(f'v_lshl_add_u32 {F(35)}, {T(31)}, 4, {KA}')
        KA = F(35)
        sKV, sKW = sCLs, sCLl
        a(f's_lshl_b32 {t0}, {sX}, 5')
        a(f's_add_u32 {t0}, {t0}, {sJ}')
        a(f's_mul_i32 {sKV}, {t0}, 196608')
        a(f's_mul_i32 {sKW}, {sW}, 49152')
        a(f's_add_u32 {sKW}, {sKW}, {sKV}')
        korder = [(par, Tn, t) for par in range(2) for Tn in range(8) for t in range(3)]
        def kload(i):
            par, Tn, t = korder[i]
            off = (16 * par + Tn) * 384 + 128 * t
            if i == 24: a(f's_add_u32 {sKW}, {sKW}, 6144')
            vm.issue(f'buffer_load_dwordx4 {KF((Tn*2+par)*3+t)}, {KA}, {rK}, {sKW} offen offset:{off - 6144*par} nt', 'k')
        for i in range(8): kload(i)
        a(f'v_mov_b32 {F(8)}, -1\nv_mov_b32 {F(9)}, -1\nv_mov_b32 {F(10)}, -1\nv_mov_b32 {F(11)}, -1')
        a(f's_lshl_b32 {t0}, s2, 2')
        a(f's_add_u32 {t0}, {t0}, {sW}')
        for lay in range(4):
            lo = XN // KB if lay == 0 else 0
            hi = (AEND if lay % 2 == 0 else BEND) // KB
            a(f's_min_u32 {t1}, {t0}, {hi - lo - 1}')
            a(f's_lshl_b32 {t1}, {t1}, 10')
            a(f's_add_u32 {t1}, {t1}, {lay*LS + lo*KB}')
            vm.issue(f'buffer_store_dwordx4 {F(8,4)}, {vL16}, {rWS}, {t1} offen sc1', 'clr')
        for i in range(8, 24): kload(i)
        a(f'v_mov_b32 {F(12)}, 0\nv_mov_b32 {F(13)}, 0\nv_mov_b32 {F(14)}, 0\nv_mov_b32 {F(15)}, 0')
        a(f's_lshl_b32 {t0}, {sW}, 10')
        a(f's_add_u32 {t0}, {t0}, {PROW}')
        a(f'v_add_u32 {T(30)}, {t0}, {vL16}')
        a(f'ds_write_b128 {T(30)}, {F(12,4)}')
        self.role_consts()
        vm.wait('x')
        self.tr64(FA, vT64)
        a(f'v_lshlrev_b32 {vXO}, 16, {vXO}')
        a(f'v_mov_b32 {T(28)}, 0\nv_mov_b32 {T(29)}, 0')
        for i in range(8):
            a(f'v_lshlrev_b32 {T(30)}, 16, {F(i)}')
            a(f'v_and_b32 {T(31)}, 0xffff0000, {F(i)}')
            a(f'v_add_f32 {T(28)}, {T(28)}, {T(30)}')
            a(f'v_fmac_f32 {T(29)}, {T(30)}, {T(30)}')
            a(f'v_add_f32 {T(28)}, {T(28)}, {T(31)}')
            a(f'v_fmac_f32 {T(29)}, {T(31)}, {T(31)}')
        self.row_red('v_add_f32', [T(28), T(29)])
        for wh in (16, 32):
            self.cross('v_add_f32', T(28), T(30), wh)
            self.cross('v_add_f32', T(29), T(31), wh)
        self.p_stats_fin()
        a('s_waitcnt lgkmcnt(0)')
        self.p_mfma(FA, None)
        self.p_out()
        vm.issue(f'buffer_store_dword {T(30)}, {vL4}, {rWS}, {sQPs} offen {self.st}', 'qp')
        a('s_mov_b64 exec, -1')
        a(f's_add_u32 {sXNl}, {sXNl}, {sSTl}')
        a(f's_add_u32 {sSTl}, {sSTl}, 1280')
        for i in range(24, 40): kload(i)
        vm.wait('qp')
        a('s_barrier')
        a(f's_lshl_b32 {t0}, 1, {sJ}')
        a(f's_cmp_gt_u32 {t3}, 7')
        a(f's_cselect_b32 {t0}, 0, {t0}')
        a(f'v_mov_b32 {T(0)}, {t0}\nv_mov_b32 {T(1)}, 0x10000')
        a(f's_lshl_b32 {t0}, {sX}, 3')
        a(f's_add_u32 {t0}, {t0}, {64*mode}')
        a(f's_cmp_eq_u32 {sW}, 0')
        a(f's_cselect_b32 {t0}, {t0}, 0x1000')
        a(f'v_mov_b32 {T(2)}, {t0}')
        a('s_mov_b64 exec, 1')
        vm.issue(f'buffer_atomic_add_x2 {T(0,2)}, {T(2)}, {rDBG}, 0 offen sc1', 'arr')
        a('s_mov_b64 exec, -1')
        for i in range(40, 48): kload(i)
        a(f's_mul_i32 {t0}, {sW}, 6144')
        a(f's_add_u32 {sKV}, {sKV}, {t0}')
        def vload(i):
            R, q = divmod(i, 6)
            if q == 0 and R: a(f's_add_u32 {sKV}, {sKV}, {24576 - 4096}')
            if q == 4: a(f's_add_u32 {sKV}, {sKV}, 4096')
            vm.issue(f'buffer_load_dwordx4 {VF(i)}, {vL16}, {rV}, {sKV} offen offset:{1024*(q%4)} nt', f'v{R}')
        for i in range(12): vload(i)
        a(f'v_lshlrev_b32 {T(2)}, 3, {vLANE}')
        a('s_mov_b64 exec, 0xff')
        vm.issue(f'buffer_load_dwordx2 {T(0,2)}, {T(2)}, {rDBG}, 0 offen offset:{64*mode} sc1', 'poll')
        a('s_mov_b64 exec, -1')
        for i in range(12, 24): vload(i)
        vm.wait('poll')
        a.label(p + 'bar_chk')
        a('s_mov_b64 exec, 0xff')
        a(f'v_mov_b32 {T(3)}, 0x200000')
        a(f'v_cmp_ne_u32 vcc, -1, {T(0)}')
        a(f'v_cmp_ne_u32 {m1}, {T(1)}, {T(3)}')
        a(f's_or_b64 vcc, vcc, {m1}')
        a('s_mov_b32 s100, 0x00020002\ns_mov_b32 s101, 0x00020002')
        a(f's_cbranch_scc1 {p}bar_slow')
        a.label(p + 'bar_ok')
        a('s_mov_b64 exec, -1')
        self.stamp(8)
        def mid():
            for i in range(24, 36): vload(i)
            return 12
        vmq = list(vm.q)
        self.stage_Q('0', mid=mid)
        vm.q = vm.q[-12:]
        self.clear_pp(lambda s: vm.issue(s, 'pp'))
        a.flush()
        a(f's_branch {p}QK')

        a.label(p + 'stream2')
        self.stamp_flush()
        vm.q.append('ml')
        rest = []
        for i in range(36, 48): rest.append(lambda i=i: vload(i))
        W10, W12, UKA, UKB, VW, VT, WV = T(0), T(1), T(2), T(3), T(4), T(5), T(6)
        a(f'v_lshrrev_b32 {W10}, 2, {vLANE}')
        a(f'v_mul_u32_u24 {W10}, 1280, {W10}')
        a(f'v_and_b32 {T(31)}, 3, {vLANE}')
        a(f'v_lshl_add_u32 {W10}, {T(31)}, 4, {W10}')
        self.w12(W12)
        self.uk_addr(UKA, UKB)
        a(f's_mul_i32 {t0}, {sW}, 6144')
        a(f'v_add_u32 {VW}, {t0}, {vL16}')
        a(f'v_lshrrev_b32 {VT}, 4, {vLANE}')
        a(f'v_bfe_u32 {T(30)}, {vLANE}, 2, 2')
        a(f'v_lshl_add_u32 {VT}, {VT}, 3, {T(30)}')
        a(f'v_mul_u32_u24 {VT}, 384, {VT}')
        a(f'v_and_b32 {T(30)}, 3, {vLANE}')
        a(f'v_lshl_add_u32 {VT}, {T(30)}, 3, {VT}')
        a(f's_mul_i32 {t0}, {sW}, 96')
        a(f'v_add_u32 {VT}, {t0}, {VT}')
        a(f's_mul_i32 {t0}, {sU}, 3277')
        a(f's_lshr_b32 {t0}, {t0}, 16')
        a(f's_mul_i32 {t1}, {t0}, 20')
        a(f's_sub_u32 {t1}, {sU}, {t1}')
        a(f's_mul_i32 {sKW}, {sX}, {768*1280}')
        a(f's_mul_i32 {t0}, {t0}, {128*1280}')
        a(f's_add_u32 {sKW}, {sKW}, {t0}')
        a(f's_lshl_b32 {t1}, {t1}, 6')
        a(f's_add_u32 {sKW}, {sKW}, {t1}')
        def wo_dma(q, srd, area):
            a(f's_lshl_b32 {t0}, {sW}, 13')
            a(f's_add_u32 m0, {t0}, {area + 1024*q}')
            a(f's_add_u32 {t1}, {sKW}, {16*1280*q}')
            vm.issue(f'buffer_load_dwordx4 {W10}, {srd}, {t1} offen nt lds', 'w')
        for q in range(8): rest.append(lambda q=q: wo_dma(q, rWOA, WOA))
        def wuv_dma(q):
            a(f'v_add_u32 {T(8)}, {64*q}, {vLANE}')
            a(f'v_mul_u32_u24 {T(9)}, 10923, {T(8)}')
            a(f'v_lshrrev_b32 {T(9)}, 16, {T(9)}')
            a(f'v_mul_u32_u24 {T(10)}, 6, {T(9)}')
            a(f'v_sub_u32 {T(8)}, {T(8)}, {T(10)}')
            a(f's_and_b32 {t0}, {sJ}, 7')
            a(f's_mul_i32 {t0}, {t0}, 96')
            a(f'v_add_u32 {T(9)}, {t0}, {T(9)}')
            a(f'v_and_b32 {T(10)}, 0x3c0, {T(9)}')
            a(f'v_bfe_u32 {T(11)}, {T(9)}, 2, 4')
            a(f'v_add_u32 {T(10)}, {T(10)}, {T(11)}')
            a(f'v_and_b32 {T(11)}, 3, {T(9)}')
            a(f'v_lshl_add_u32 {T(10)}, {T(11)}, 4, {T(10)}')
            a(f'v_mul_u32_u24 {T(10)}, 12288, {T(10)}')
            a(f'v_lshl_add_u32 {WV}, {T(8)}, 4, {T(10)}')
            a(f's_mul_i32 {t0}, {sW}, 9216')
            a(f's_add_u32 m0, {t0}, {WUV + 1024*q}')
            a(f's_lshr_b32 {t0}, {sJ}, 3')
            a(f's_lshl_b32 {t1}, {sX}, 2')
            a(f's_add_u32 {t0}, {t0}, {t1}')
            a(f's_mul_i32 {t0}, {t0}, 384')
            a(f's_mul_i32 {t1}, {sW}, 96')
            a(f's_add_u32 {t0}, {t0}, {t1}')
            vm.issue(f'buffer_load_dwordx4 {WV}, {rWUV}, {t0} offen nt lds', 'w')
        for q in range(9): rest.append(lambda q=q: wuv_dma(q))
        for q in range(8): rest.append(lambda q=q: wo_dma(q, rWOB, WOB))
        def wqb_pf(q):
            a(f's_add_u32 {t0}, {sWQ}, {16*12288*q}')
            vm.issue(f'buffer_load_dwordx4 {F(32,4)}, {W12}, {rWQB}, {t0} offen nt', 'w')
        tail = [lambda q=q: wqb_pf(q) for q in range(8)]
        tail.append(lambda: self.uk_loads(UKA, UKB, lambda o: F(32, 4), lambda s: vm.issue(s, 'w'), 'nt'))
        per = -(-len(rest) // 8)
        for R in range(8):
            for f in rest[R * per:(R + 1) * per]: f()
            vm.wait(f'v{R}')
            buf = CKV + 24576 * (R & 1)
            for q in range(6):
                a(f'ds_write_b128 {VW}, {VF(6*R+q)} offset:{buf + 1024*q}')
            a('s_waitcnt lgkmcnt(0)')
            a('s_barrier')
            for tt in range(2):
                for tau in range(3):
                    for hf in range(2):
                        a(f'ds_read_b64_tr_b16 {VF(6*R+3*tt+tau, 2*hf, 2)}, {VT} offset:{buf + 12288*tt + 1536*hf + 32*tau}')
        a('s_waitcnt lgkmcnt(0)')
        a('s_barrier')
        a(f's_and_b32 {t0}, {sJ}, 15')
        a(f's_lshl_b32 {t1}, {sX}, 4')
        a(f's_add_u32 {t0}, {t0}, {t1}')
        a(f's_mul_i32 {t2}, {t0}, {32*1536}')
        a(f's_mul_i32 {t0}, {sW}, 384')
        a(f's_add_u32 {t2}, {t2}, {t0}')
        a(f's_mul_i32 {t3}, {sW}, 12288')
        for tau in range(2):
            for t6 in range(6):
                a(f's_add_u32 m0, {t3}, {CKV + (6*tau+t6)*1024}')
                a(f's_add_u32 {t1}, {t2}, {tau*24576 + 64*t6}')
                vm.issue(f'buffer_load_dwordx4 {vCK}, {rCKV}, {t1} offen nt lds', 'w')
        for f in tail: f()
        self.late_consts()
        self.stamp_idle()
        self.stamp(10)
        a.flush()
        a(f's_branch {p}PV')

        a.label(p + 'bar_slow')
        a(f's_mov_b32 {t0}, 0')
        for i in range(8):
            a(f'v_readlane_b32 {t1}, {T(1)}, {i}')
            a(f's_lshr_b32 {t1}, {t1}, 16')
            a(f's_add_u32 {t0}, {t0}, {t1}')
        if mode == 0:
            a(f's_cmp_ge_u32 {t0}, 256')
            a.flush()
            a(f's_cbranch_scc1 {p}fail')
        a(f's_sub_u32 {sBUD}, {sBUD}, 1')
        a.flush()
        a(f's_cbranch_scc1 {p}bar_to')
        a(f'buffer_load_dwordx2 {T(0,2)}, {T(2)}, {rDBG}, 0 offen offset:{64*mode} sc1')
        a('s_waitcnt vmcnt(0)')
        a(f's_branch {p}bar_chk')
        a.label(p + 'bar_to')
        a(f's_mov_b32 {sBUD}, 0')
        a(f's_branch {p}bar_ok')
        if mode == 0:
            a.label(p + 'fail')
            a('s_mov_b64 exec, -1')
            a('s_waitcnt vmcnt(0) lgkmcnt(0)')
            a('s_barrier')
            a('s_branch m1_start')

        a.label(p + 'layerA')
        self.stamp(0)
        self.stage_P(FA, 'A')
        self.stamp(1)
        self.clear_pp()
        self.stage_Q('A')
        a.label(p + 'QK')
        self.stamp(2)
        self.stage_QK()
        self.stamp(3)
        a(f's_cmp_eq_u32 {sLAY}, 0')
        a.flush()
        a(f's_cbranch_scc1 {p}stream2')
        a.label(p + 'PV')
        self.stage_PV()
        a.label(p + 'O')
        self.stamp(12)
        self.stage_O()
        self.stamp(13)
        a(f's_bitcmp1_b32 {sLAY}, 0')
        a.flush()
        a(f's_cbranch_scc1 {p}nofill')
        self.fill_wqb()
        a.flush()
        a(f's_branch {p}E')
        a.label(p + 'nofill')
        if opt.get('dE'): a(f's_sleep {opt["dE"]}')
        a.label(p + 'E')
        a(f's_cmp_ge_u32 {sE}, 20')
        a.flush()
        a(f's_cbranch_scc1 {p}noE')
        self.stage_E()
        self.stamp(14)
        a.label(p + 'noE')
        a(f's_add_u32 {sLAY}, {sLAY}, 1')
        a(f's_add_u32 s56, s56, {LS}')
        a('s_addc_u32 s57, s57, 0')
        a(f's_cmp_eq_u32 {sLAY}, 4')
        a.flush()
        a(f's_cbranch_scc1 {p}done')
        a(f's_cmp_eq_u32 {sLAY}, 2')
        a(f's_cbranch_scc1 {p}layerA')
        self.stamp(0)
        self.stage_P(F, 'B')
        self.stamp(1)
        self.uk_addr(T(28), T(29))
        self.uk_loads(T(28), T(29), lambda o: F(o, 4), a, 'nt')
        self.stage_Q('B')
        self.stamp(2)
        self.stage_UK()
        self.stamp(3)
        self.stage_S()
        self.stamp(4)
        self.stage_R()
        self.stamp(5)
        self.stage_UV()
        a.flush()
        a(f's_branch {p}O')
        a.label(p + 'final')
        a(f's_cmp_lg_u32 {sX}, 0')
        a(f's_cbranch_scc1 {p}done')
        a(f's_lshl_b32 {t0}, {sE}, 6')
        a(f'buffer_store_short {T(0)}, {vXS}, {rOUT}, {t0} offen')
        a.label(p + 'done')
        if opt.get('stamps'):
            a('s_mov_b64 exec, -1')
            a(f's_mov_b32 {sLAY}, 3')
            self.stamp(15, now=True)
            a('s_load_dwordx2 s[56:57], s[0:1], 104')
            a(f's_lshl_b32 {t0}, s2, 2')
            a(f's_add_u32 {t0}, {t0}, {sW}')
            a(f's_lshl_b32 {t0}, {t0}, 8')
            a('s_waitcnt lgkmcnt(0)')
            a(f's_add_u32 s56, s56, {STAMPS}')
            a('s_addc_u32 s57, s57, 0')
            a(f'buffer_store_dword v0, {vL4}, {rWS}, {t0} offen')
        a('s_endpgm')
        self.emit_stubs()

    def role_consts(self):
        a = self.a
        a(f's_lshr_b32 {t0}, {sJ}, 3')
        a(f's_and_b32 {t1}, {sJ}, 7')
        a(f's_lshl_b32 {t2}, {sX}, 2')
        a(f's_add_u32 {t2}, {t2}, {t0}')
        a(f's_mul_i32 {sQPl}, {t2}, 3840')
        a(f's_lshl_b32 {sMLl}, {t2}, 8')
        a(f's_add_u32 {sMLl}, {sMLl}, {ML}')
        a(f's_lshl_b32 {sMLs}, {t1}, 2')
        a(f's_add_u32 {sMLs}, {sMLs}, {sW}')
        a(f's_mul_i32 {sQLs}, {sMLs}, 48')
        a(f's_mul_i32 {sUK}, {sMLs}, {24*12288}')
        a(f's_lshl_b32 {sMLs}, {sMLs}, 3')
        a(f's_add_u32 {sMLs}, {sMLs}, {sMLl}')
        a(f's_mul_i32 vcc_lo, {t2}, 1536')
        a(f's_add_u32 {sQLs}, {sQLs}, vcc_lo')
        a(f's_add_u32 {sQLs}, {sQLs}, {QL}')
        a(f's_mul_i32 vcc_lo, {t2}, 384')
        a(f's_add_u32 {sUK}, {sUK}, vcc_lo')
        a(f's_lshl_b32 {sCMl}, {t2}, 10')
        a(f's_add_u32 {sCMl}, {sCMl}, {CM}')
        a(f's_mul_i32 {sOPl}, {sX}, 12288')
        a(f's_add_u32 {sOPl}, {sOPl}, {OP}')
        a(f's_mul_i32 {sOPs}, {t1}, 1536')
        a(f's_add_u32 {sOPs}, {sOPs}, {sOPl}')
        a(f's_mul_i32 vcc_lo, {t0}, 384')
        a(f's_add_u32 {sOPs}, {sOPs}, vcc_lo')
        a(f's_mul_i32 vcc_lo, {sW}, 96')
        a(f's_add_u32 {sOPs}, {sOPs}, vcc_lo')
        a(f's_lshl_b32 vcc_lo, {t1}, 1')
        a(f'v_add_u32 {vML}, vcc_lo, {vI}')
        a(f'v_and_b32 {vML}, 15, {vML}')
        a(f'v_lshlrev_b32 {vML}, 4, {vML}')
        a(f's_mul_i32 {t0}, {sU}, 3277')
        a(f's_lshr_b32 {t0}, {t0}, 16')
        a(f's_mul_i32 {t1}, {t0}, 20')
        a(f's_sub_u32 {t1}, {sU}, {t1}')
        a(f's_lshl_b32 vcc_lo, {t0}, 8')
        a(f's_add_u32 {sOPl}, {sOPl}, vcc_lo')
        a(f's_mul_i32 {sYPs}, {t1}, 6144')
        a(f's_mul_i32 vcc_lo, {sX}, 768')
        a(f's_add_u32 {sYPs}, {sYPs}, vcc_lo')
        a(f's_lshl_b32 vcc_lo, {t0}, 7')
        a(f's_add_u32 {sYPs}, {sYPs}, vcc_lo')
        a(f's_add_u32 {sYPs}, {sYPs}, {YP}')
        a(f's_mul_i32 {sYPl}, {sE}, 6144')
        a(f's_add_u32 {sYPl}, {sYPl}, {YP}')
        a(f's_lshl_b32 {sSTl}, {sX}, 11')
        a(f's_add_u32 {sSTl}, {sSTl}, {XN}')
        a(f's_lshl_b32 {sXNs}, {sE}, 6')
        a(f's_add_u32 {sXNs}, {sXNs}, {sSTl}')
        a(f's_add_u32 {sXNs}, {sXNs}, {LS}')
        a(f's_lshl_b32 {sSTs}, {sE}, 3')
        a(f's_add_u32 {sSTs}, {sSTs}, {sSTl}')
        a(f's_add_u32 {sSTs}, {sSTs}, {LS + 1280}')
        a(f's_lshr_b32 {t0}, {sJ}, 4')
        a(f's_and_b32 {t1}, {sJ}, 15')
        a(f's_mul_i32 vcc_hi, {sW}, 384')
        a(f's_mul_i32 {sQLl}, {t0}, 24576')
        a(f's_add_u32 {sQLl}, {sQLl}, vcc_hi')
        a(f's_add_u32 {sQLl}, {sQLl}, {QL}')
        a(f's_lshl_b32 {sPMl}, {sX}, 12')
        a(f's_add_u32 {sPMl}, {sPMl}, {PM}')
        a(f's_lshl_b32 {sPMs}, {t0}, 11')
        a(f's_add_u32 {sPMs}, {sPMs}, {sPMl}')
        a(f's_lshl_b32 vcc_lo, {t1}, 3')
        a(f's_add_u32 {sPMs}, {sPMs}, vcc_lo')
        a(f's_lshl_b32 vcc_lo, {sJ}, 7')
        a(f's_add_u32 {sPMl}, {sPMl}, vcc_lo')
        a(f's_mul_i32 {sPPl}, {sX}, 786432')
        a(f's_add_u32 {sPPl}, {sPPl}, {PP}')
        a(f's_add_u32 {sPPl}, {sPPl}, vcc_hi')
        a(f's_mul_i32 {sPPs}, {t0}, {256*1536}')
        a(f's_add_u32 {sPPs}, {sPPs}, {sPPl}')
        a(f's_mul_i32 vcc_lo, {t1}, 1536')
        a(f's_add_u32 {sPPs}, {sPPs}, vcc_lo')
        a(f's_mul_i32 vcc_lo, {sJ}, 24576')
        a(f's_add_u32 {sPPl}, {sPPl}, vcc_lo')
        a(f's_lshl_b32 {sCMs}, {sJ}, 3')
        a(f's_add_u32 {sCMs}, {sCMs}, {sX}')
        a(f's_lshl_b32 {sCMs}, {sCMs}, 7')
        a(f's_add_u32 {sCMs}, {sCMs}, {CM}')

    def late_consts(self):
        a = self.a
        a(f's_lshl_b32 {t0}, {sJ}, 3')
        a(f's_add_u32 {t0}, {t0}, {sX}')
        a(f's_mul_i32 {sCLs}, {t0}, 1536')
        a(f's_mul_i32 {t0}, {sW}, 384')
        a(f's_add_u32 {sCLs}, {sCLs}, {t0}')
        a(f's_add_u32 {sCLs}, {sCLs}, {CL}')
        a(f's_lshr_b32 {t0}, {sJ}, 3')
        a(f's_lshl_b32 {t1}, {sX}, 2')
        a(f's_add_u32 {t0}, {t0}, {t1}')
        a(f's_mul_i32 {sCLl}, {t0}, 12288')
        a(f's_and_b32 {t1}, {sJ}, 7')
        a(f's_mul_i32 {t1}, {t1}, 192')
        a(f's_add_u32 {sCLl}, {sCLl}, {t1}')
        a(f's_add_u32 {sCLl}, {sCLl}, {CL}')

    def prologue(self):
        a = self.a
        a('s_cmp_ge_u32 s2, 256')
        a('s_cbranch_scc1 L_exit')
        ptr = {8: 8, 12: 16, 16: 24, 20: 32, 24: 48, 28: 56, 32: 64, 36: 72, 40: 80, 44: 0, 48: 88, 52: 96, 56: 104}
        size = {8: 50331648, 12: 50331648, 16: 7864320, 20: 7864320, 24: 6291456, 28: 7864320, 32: 9437184,
                36: 9437184, 40: 7864320, 44: 1280, 48: 1280, 52: 256, 56: 48 << 20}
        for r in (16, 44, 8, 56, 12, 52, 20, 24, 28, 32, 36, 40, 48):
            a(f's_load_dwordx2 s[{r}:{r+1}], s[0:1], {ptr[r]}')
        if self.opt.get('stamps'):
            a('s_memrealtime s[96:97]')
        a(f'v_lshrrev_b32 {T(0)}, 6, v0')
        a(f'v_and_b32 {vLANE}, 63, v0')
        a(f'v_readfirstlane_b32 {sW}, {T(0)}')
        for r in ptr:
            a(f's_mov_b32 s{r+2}, {size[r]}')
            a(f's_mov_b32 s{r+3}, 0x20000')
        a(f's_mov_b32 {sBUD}, 0x20000')
        a('s_mov_b32 s88, 0x00010001\ns_mov_b32 s89, 0x00010001')
        a('s_mov_b32 s90, 0x55555555\ns_mov_b32 s91, 0x00005555')
        a('s_mov_b32 s92, 0x0fff0fff\ns_mov_b32 s93, 0x0fff0fff')
        a('s_mov_b32 s94, 0x01030103\ns_mov_b32 s95, 0x01030103')
        G, B4, C4 = T(0), T(1), T(2)
        a(f'v_lshlrev_b32 {vL16}, 4, {vLANE}')
        a(f'v_lshlrev_b32 {vL4}, 2, {vLANE}')
        a(f'v_lshlrev_b32 {vL2}, 1, {vLANE}')
        a(f'v_and_b32 {vI}, 15, {vLANE}')
        a(f'v_and_b32 {vG16}, 48, {vLANE}')
        a(f'v_lshrrev_b32 {G}, 4, {vLANE}')
        a(f'v_bfe_u32 {B4}, {vLANE}, 2, 2')
        a(f'v_and_b32 {C4}, 3, {vLANE}')
        a(f'v_and_b32 {T(3)}, 7, {vLANE}')
        a(f'v_lshl_add_u32 {vXS}, {T(3)}, 2, {G}')
        a(f'v_lshlrev_b32 {vXS}, 1, {vXS}')
        a(f'v_mul_u32_u24 {vOA}, 1536, {T(3)}')
        a(f'v_add_u32 {vOA}, {vOA}, {vG16}')
        a(f'v_mul_u32_u24 {vCK}, 1536, {vI}')
        a(f'v_add_u32 {vCK}, {vCK}, {vG16}')
        a(f's_lshl_b32 {t0}, {sW}, 11')
        a(f's_add_u32 {t0}, {t0}, {SCR}')
        a(f'v_add_u32 {vSW}, {t0}, {vL16}')
        a(f'v_lshlrev_b32 {vQW}, 3, {vLANE}')
        a(f'v_add_u32 {vQW}, {t0}, {vQW}')
        a(f'v_lshl_add_u32 {T(3)}, {G}, 3, {B4}')
        a(f'v_lshlrev_b32 {T(3)}, 6, {T(3)}')
        a(f'v_lshl_add_u32 {T(3)}, {C4}, 3, {T(3)}')
        a(f'v_add_u32 {vTS}, {t0}, {T(3)}')
        a(f's_lshl_b32 {t1}, {sW}, 13')
        a(f's_add_u32 {t1}, {t1}, {WOB}')
        a(f'v_add_u32 {vT64}, {t1}, {T(3)}')
        a(f'v_and_b32 {T(3)}, 1, {G}')
        a(f'v_lshl_add_u32 {T(3)}, {T(3)}, 2, {C4}')
        a(f'v_lshlrev_b32 {T(3)}, 4, {T(3)}')
        a(f'v_add_u32 {T(3)}, {t0}, {T(3)}')
        a(f'v_lshrrev_b32 {T(4)}, 1, {G}')
        a(f'v_mov_b32 {T(5)}, {PROW + 256}')
        a(f'v_cmp_eq_u32 vcc, {B4}, {T(4)}')
        a(f'v_cndmask_b32 {vQB0}, {T(5)}, {T(3)}, vcc')
        a(f'v_add_u32 {T(4)}, 2, {T(4)}')
        a(f'v_cmp_eq_u32 vcc, {B4}, {T(4)}')
        a(f'v_cndmask_b32 {vQB1}, {T(5)}, {T(3)}, vcc')
        a(f'v_lshl_add_u32 {vPR}, {C4}, 10, {vG16}')
        a(f'v_add_u32 {vPR}, {PROW}, {vPR}')
        a(f's_mul_i32 {t1}, {sW}, 1280')
        a(f's_add_u32 {t1}, {t1}, {PROW}')
        a(f'v_and_b32 {vPW}, 0xf0, {vL4}')
        a(f'v_add_u32 {vPW}, {t1}, {vPW}')
        a(f'v_and_b32 {vCT}, 0xf0, {vL4}')
        a(f'v_lshrrev_b32 {T(3)}, 1, {C4}')
        a(f'v_lshl_add_u32 {vCT}, {T(3)}, 8, {vCT}')
        a(f'v_and_b32 {T(3)}, 1, {C4}')
        a(f'v_lshl_add_u32 {vCT}, {T(3)}, 3, {vCT}')
        a(f's_mul_i32 {t1}, {sW}, 12288')
        a(f'v_add_u32 {vCT}, {t1}, {vCT}')
        a(f'v_mul_u32_u24 {vPPs}, 98304, {G}')
        a(f'v_lshl_add_u32 {vPPs}, {vI}, 3, {vPPs}')
        a(f'v_mul_u32_u24 {vRG}, 1536, {G}')
        a(f'v_lshl_add_u32 {vRG}, {vI}, 4, {vRG}')
        a(f'v_lshrrev_b32 {vQLs}, 1, {vLANE}')
        a(f'v_lshl_add_u32 {T(3)}, {G}, 2, 32')
        a(f'v_cmp_eq_u32 vcc, 1, {vI}')
        a(f'v_cndmask_b32 {vQLs}, {vQLs}, {T(3)}, vcc')
        if self.opt.get('stamps'):
            a('v_mov_b32 v0, 0')
            a('s_waitcnt lgkmcnt(0)')
            a('v_writelane_b32 v0, s96, 9')

    def build(self):
        a = self.a
        self.prologue()
        if self.opt.get('force1'):
            a('s_waitcnt lgkmcnt(0)')
            a.flush()
            a('s_branch m1_start')
        self.body(0)
        self.body(1)
        a.label('L_exit')
        a('s_endpgm')
        txt = a.render()
        hdr = open('cdna_kernels/' + NAME + '.s.ref').read().split('; Override launch')[0]
        out = hdr
        out += f'; @launch grid=(256,1,1) block=(256,1,1) lds={LDS_SIZE}\n'
        out += '; Generated by gen/gen.py (hand-designed persistent kernel; see that script for the structure).\n'
        out += f'''.amdgcn_target "amdgcn-amd-amdhsa--gfx950"
.text
.globl {NAME}_kernel
.p2align 8
.type {NAME}_kernel,@function
{NAME}_kernel:
'''
        out += txt
        out += f'''.section .rodata,"a"
.p2align 6
.amdhsa_kernel {NAME}_kernel
  .amdhsa_next_free_vgpr 512
  .amdhsa_next_free_sgpr 102
  .amdhsa_accum_offset 256
  .amdhsa_group_segment_fixed_size 0
  .amdhsa_kernarg_size 112
  .amdhsa_user_sgpr_count 2
  .amdhsa_user_sgpr_kernarg_segment_ptr 1
  .amdhsa_system_sgpr_workgroup_id_x 1
.end_amdhsa_kernel
'''
        return out


DEFAULT = dict(dE=14, dQL=24, dCL=10)

if __name__ == '__main__':
    opt = dict(DEFAULT)
    outp = 'cdna_kernels/' + NAME + '.s'
    for arg in sys.argv[1:]:
        if arg.startswith('-o'):
            outp = arg[2:]
        else:
            k, v = arg.split('=')
            opt[k] = int(v)
    g = Gen(opt)
    s = g.build()
    open(outp, 'w').write(s)
    print('wrote', outp, len(s), 'bytes; nops inserted:', g.a.nnop)
```
